```python
import torch

def _softmax(x, axis=-1):
    return torch.softmax(x, dim=axis)
def _gelu(x):
    return torch.nn.functional.gelu(x, approximate="tanh")
def _silu(x):
    return torch.nn.functional.silu(x)
def _sigmoid(x):
    return torch.sigmoid(x)
def _layernorm(x, axis=-1, eps=1e-5):
    m = x.mean(dim=axis, keepdim=True)
    v = x.var(dim=axis, keepdim=True, unbiased=False)
    return (x - m) / torch.sqrt(v + eps)
def _scatter_add(tgt, idx, src, axis=0):
    return tgt.clone().index_add_(axis, idx, src)
def _segment_sum(src, seg, n):
    out = torch.zeros((n,) + src.shape[1:], dtype=src.dtype)
    return out.index_add_(0, seg, src)
def _pad(x, pw):
    flat = tuple(v for pair in reversed(pw) for v in pair)
    return torch.nn.functional.pad(x, flat)

kernel_name = 'standalone__gqa_block_cached__sampling'

def setup_inputs():

    _w = (lambda a: (lambda t: t.to(torch.bfloat16) if t.is_floating_point() else t)(torch.as_tensor(a)))
    B, Sq, D = 32, 16, 512
    Hq, Hkv, Sk, Dh = 32, 8, 2048, 128
    assert Hq % Hkv == 0, (Hq, Hkv)
    return {
        "x": _w((lambda *s: torch.randn(*s, dtype=torch.bfloat16) * 0.8)(B, Sq, D)),
        "k_cache": _w((lambda *s: torch.randn(*s, dtype=torch.bfloat16) * 0.8)(B, Hkv, Sk, Dh)),
        "v_cache": _w((lambda *s: torch.randn(*s, dtype=torch.bfloat16) * 0.05)(B, Hkv, Sk, Dh)),
        "wq": _w((lambda *s: torch.randn(*s, dtype=torch.bfloat16) * 0.8)(D, Hq * Dh) * (D ** -0.5)),
        "wo": _w((lambda *s: torch.randn(*s, dtype=torch.bfloat16) * 0.05)(Hq * Dh, D) * ((Hq * Dh) ** -0.5)),
    }

def reference(x, k_cache, v_cache, wq, wo):
    B, Sq, D = x.shape
    Hq, Dh = 32, 128
    Hkv = k_cache.shape[1]
    rep = Hq // Hkv
    q = (lambda x, *d: x.permute(*d))((x @ wq).reshape(B, Sq, Hq, Dh), 0, 2, 1, 3)
    k = (lambda x, n, axis: torch.repeat_interleave(x, n, dim=axis))(k_cache, rep, axis=1)
    v = (lambda x, n, axis: torch.repeat_interleave(x, n, dim=axis))(v_cache, rep, axis=1)
    scores = torch.einsum("bhqd,bhkd->bhqk", q, k) * (Dh ** -0.5)
    p = _softmax(scores, axis=-1)
    o = torch.einsum("bhqk,bhkd->bhqd", p, v)
    return (lambda x, *d: x.permute(*d))(o, 0, 2, 1, 3).reshape(B, Sq, Hq * Dh) @ wo
```

```python
import re
REG = re.compile(r'^(-|\|)?(v|a|s)(\d+)$|^(v|a|s)\[(\d+):(\d+)\]$')
def regs_of(op):
    op = op.strip()
    if op.startswith('-'): op = op[1:]
    if op.startswith('abs(') : op = op[4:-1]
    if op in ('vcc', 'vcc_lo', 'vcc_hi'): return [('vcc', 0)]
    if op == 'm0': return [('m0', 0)]
    if op == 'exec': return [('exec', 0)]
    m = re.match(r'^(v|a|s)(\d+)$', op)
    if m: return [(m.group(1), int(m.group(2)))]
    m = re.match(r'^(v|a|s)\[(\d+):(\d+)\]$', op)
    if m: return [(m.group(1), i) for i in range(int(m.group(2)), int(m.group(3)) + 1)]
    return []
TRANS = ('v_exp_f32', 'v_log_f32', 'v_rcp_f32', 'v_rsq_f32', 'v_sqrt_f32')
def parse(line):
    line = line.split(';')[0].strip()
    parts = line.split(None, 1)
    mn = parts[0]
    rest = parts[1] if len(parts) > 1 else ''
    ops = [o.strip() for o in rest.split(',')] if rest else []
    mods = ''
    if ops:
        sp = ops[-1].split(None, 1)
        ops[-1] = sp[0]
        mods = sp[1] if len(sp) > 1 else ''
    kind = 'other'; defs = []; uses = []
    R = lambda o: regs_of(o)
    if mn.startswith('v_mfma'):
        kind = 'mfma'; defs = R(ops[0]); uses = R(ops[1]) + R(ops[2]); srcc = R(ops[3])
        return dict(kind=kind, mn=mn, defs=defs, uses=uses, srcc=srcc)
    if mn.startswith('v_cmp'):
        kind = 'valu'; defs = R(ops[0]); uses = sum((R(o) for o in ops[1:]), [])
    elif mn.startswith('v_permlane'):
        kind = 'valu'; defs = R(ops[0]) + R(ops[1]); uses = defs
    elif mn.startswith('v_readfirstlane') or mn.startswith('v_readlane'):
        kind = 'valu'; defs = R(ops[0]); uses = sum((R(o) for o in ops[1:]), [])
    elif mn.startswith('v_'):
        kind = 'valu'; defs = R(ops[0]); uses = sum((R(o) for o in ops[1:]), [])
        if mn.startswith('v_fmac') : uses += defs
        if mn.startswith('v_cndmask') and len(ops) == 3: uses += [('vcc', 0)]
    elif mn.startswith('ds_read'):
        kind = 'ds'; defs = R(ops[0]); uses = R(ops[1])
    elif mn.startswith('ds_write'):
        kind = 'ds'; uses = sum((R(o) for o in ops), [])
    elif mn.startswith('buffer_load'):
        kind = 'vmem'
        if ' lds' in (' ' + mods) or mods.endswith('lds'):
            uses = sum((R(o) for o in ops), []) + [('m0', 0)]; kind = 'dma'
        else:
            defs = R(ops[0]); uses = sum((R(o) for o in ops[1:]), [])
    elif mn.startswith('buffer_store'):
        kind = 'vstore'; uses = sum((R(o) for o in ops), [])
        return dict(kind=kind, mn=mn, defs=[], uses=uses, data=R(ops[0]))
    elif mn.startswith('s_'):
        kind = 'salu'
        if mn.startswith(('s_cmp', 's_waitcnt', 's_barrier', 's_nop', 's_cbranch', 's_branch', 's_sleep', 's_endpgm', 's_setprio')):
            uses = sum((R(o) for o in ops), [])
        else:
            defs = R(ops[0]); uses = sum((R(o) for o in ops[1:]), [])
    return dict(kind=kind, mn=mn, defs=defs, uses=uses)

class Asm:
    MFMA_VALU = 10
    def __init__(self):
        self.lines = []
        self.hist = []
        self.vm = []
        self.lg = []
        self.nins = 0
    def raw(self, s):
        self.lines.append(s)
    def label(self, name):
        self.lines.append(name + ':')
    def flush_hist(self):
        self.hist = []
    def need(self, p):
        req = 0
        dist = 0
        U = set(p['uses']) | set(p.get('srcc', [])); D = set(p['defs'])
        for q, st in reversed(self.hist):
            n = 0
            qd = set(q['defs'])
            if q['kind'] == 'valu':
                vd = {r for r in qd if r[0] in 'va' and r[0] != 'vcc'}
                sd = {r for r in qd if r[0] in ('s', 'vcc')}
                if p['kind'] == 'mfma' and vd & U: n = max(n, 2)
                if p['mn'].startswith('v_permlane') and vd & U: n = max(n, 2)
                if p['mn'].startswith(('v_readfirstlane', 'v_readlane')) and vd & U: n = max(n, 1)
                if q['mn'].startswith(TRANS) and p['kind'] in ('valu', 'mfma') and vd & U: n = max(n, 1 if p['kind'] == 'valu' else 2)
                if sd & U:
                    if p['kind'] in ('vmem', 'dma', 'vstore'): n = max(n, 5)
                    elif p['kind'] == 'valu': n = max(n, 2)
                    elif p['kind'] == 'salu': n = max(n, 1)
            if q['kind'] == 'mfma':
                if p['kind'] == 'mfma':
                    if qd & set(p['uses']): n = max(n, self.MFMA_VALU)
                    sc = set(p['srcc'])
                    if qd & sc and qd != sc: n = max(n, self.MFMA_VALU)
                    if qd & D and not (qd == D and qd == sc): n = max(n, self.MFMA_VALU)
                else:
                    if qd & (U | D): n = max(n, self.MFMA_VALU)
                    if p['kind'] == 'valu' and set(q['srcc']) & D: n = max(n, 4)
            if q['kind'] == 'salu' and ('m0', 0) in qd and p['kind'] == 'dma': n = max(n, 1)
            if q['kind'] == 'vstore' and len(q['data']) >= 3 and set(q['data']) & D: n = max(n, 2)
            req = max(req, n - dist)
            dist += st
            if dist > 24: break
        return req
    def __call__(self, s, tag=None):
        for line in s.split('\n'):
            line = line.strip()
            if not line: continue
            if line.endswith(':'):
                self.label(line[:-1]); continue
            p = parse(line)
            r = self.need(p)
            while r > 0:
                k = min(r, 16)
                self.lines.append(f's_nop {k-1}')
                self.hist.append((parse('s_nop 0'), k)); r -= k
            self.lines.append(line)
            st = 1
            if p['mn'] == 's_nop': st = int(line.split()[1]) + 1
            self.hist.append((p, st))
            if len(self.hist) > 40: self.hist.pop(0)
            self.nins += 1
            if p['kind'] in ('vmem', 'dma', 'vstore'): self.vm.append(tag)
            if p['kind'] == 'ds': self.lg.append(tag)
    def wait_vm(self, tag):
        idx = [i for i, t in enumerate(self.vm) if t == tag]
        if not idx: return
        n = len(self.vm) - 1 - idx[-1]
        assert n <= 63, n
        self(f's_waitcnt vmcnt({n})')
        self.vm = self.vm[idx[-1] + 1:]
    def wait_vm_all(self):
        self('s_waitcnt vmcnt(0)'); self.vm = []
    def wait_lg(self, tag):
        idx = [i for i, t in enumerate(self.lg) if t == tag]
        if not idx: return
        n = len(self.lg) - 1 - idx[-1]
        if n > 15: n = 15
        self(f's_waitcnt lgkmcnt({n})')
        self.lg = self.lg[len(self.lg) - n:] if n else []
    def wait_lg_all(self):
        self('s_waitcnt lgkmcnt(0)'); self.lg = []
    def text(self):
        return '\n'.join(self.lines) + '\n'
```

```python
import sys, math
from asmlib import Asm
KN = "standalone__gqa_block_cached__sampling_kernel"
QX, OX, NQB, NOB, STB = 0, 0x800000, 0x1000000, 0x1010000, 0x10000000
O_ = 8; Q_ = 40; F_ = 56; S_ = 88; P_ = 96; KA = 100; VA = 104
DK = 112; DV = 114; DO = 116; M_ = 118; L_ = 119; T_ = 120; WV = 128
XF = 128; F2 = 192; G_ = 224
LANE16 = 7
def vr(b, n=4): return f"v[{b}:{b+n-1}]"
def ar(b, n=4): return f"a[{b}:{b+n-1}]"

def gen(stamps=False, L=2, catch=1.0, nt="nt", wo_start=12, wo_pat=(1,1,0), pre_kv=4, mid_kv=3, T=8.0, wont="", dbg=None):
    a = Asm()
    st = [0]
    def stamp():
        if not stamps: return
        k = st[0]; st[0] += 1
        assert k < 11
        a(f"s_memrealtime s[{80+2*k}:{81+2*k}]"); a("s_waitcnt lgkmcnt(0)"); a.lg = []
    hdr = open("standalone__gqa_block_cached__sampling.s.ref").read().split("; Override")[0]
    a.raw(hdr.rstrip())
    a.raw("; @launch grid=(256,1,1) block=(256,1,1) lds=163840")
    a.raw('.amdgcn_target "amdgcn-amd-amdhsa--gfx950"\n.text')
    a.raw(f".globl {KN}\n.p2align 8\n.type {KN},@function")
    a.label(KN)
    a("s_cmp_ge_u32 s2, 256\ns_cbranch_scc1 L_end")
    stamp()
    a("s_load_dwordx16 s[64:79], s[0:1], 0")
    a("v_lshrrev_b32 v1, 6, v0\nv_and_b32 v0, 63, v0\nv_readfirstlane_b32 s36, v1")
    a("s_and_b32 s37, s2, 7\ns_lshr_b32 s38, s2, 3\ns_and_b32 s39, s38, 3\ns_lshr_b32 s40, s38, 2")
    a("s_lshl_b32 s41, s36, 11\ns_lshl_b32 s42, s36, 12")
    a("v_lshrrev_b32 v1, 4, v0\nv_and_b32 v2, 15, v0\nv_bfe_u32 v3, v0, 2, 2\nv_and_b32 v4, 3, v0")
    a(f"v_lshlrev_b32 v{LANE16}, 4, v0")
    a(f"s_lshl_b32 s56, s40, 3\ns_add_u32 s56, s56, s37\ns_lshl_b32 s56, s56, 7\ns_add_u32 s56, s56, {NQB}")
    a(f"s_lshl_b32 s57, s38, 7\ns_add_u32 s57, s57, {NOB}")
    a("s_waitcnt lgkmcnt(0)")
    a("s_mov_b32 s28, s78\ns_mov_b32 s29, s79\ns_mov_b32 s30, 0x20000000\ns_mov_b32 s31, 0x20000")
    a("buffer_load_dword v5, off, s[28:31], s56 sc1", tag='nq')
    a("buffer_load_dword v6, off, s[28:31], s57 sc1", tag='no')
    a("s_lshl_b32 s43, s40, 2\ns_add_u32 s43, s43, s36\ns_lshl_b32 s43, s43, 14")
    a("s_add_u32 s20, s64, s43\ns_addc_u32 s21, s65, 0\ns_mov_b32 s22, 16384\ns_mov_b32 s23, 0x20000")
    a(f"s_lshl_b32 s46, s36, 14\ns_add_u32 s46, s46, {6*16384}\ns_lshl_b32 s47, s39, 2")
    for n in range(16):
        a(f"s_add_u32 s44, s47, {n}\ns_and_b32 s44, s44, 15\ns_lshl_b32 s45, s44, 10\ns_add_u32 m0, s45, s46")
        a(f"s_lshl_b32 s44, s44, 4\nv_xor_b32 v{T_+(n&1)}, s44, v{LANE16}")
        a(f"buffer_load_dwordx4 v{T_+(n&1)}, s[20:23], s45 offen lds", tag='x')
    a("s_lshl_b32 s43, s37, 2\ns_add_u32 s43, s43, s39\ns_lshl_b32 s43, s43, 8")
    a(f"s_add_u32 s16, s70, s43\ns_addc_u32 s17, s71, 0\ns_mov_b32 s18, {511*8192+256}\ns_mov_b32 s19, 0x20000")
    a("v_lshlrev_b32 v126, 1, v1\nv_xor_b32 v124, v2, v126\nv_xor_b32 v125, 8, v124")
    a("v_lshlrev_b32 v124, 4, v124\nv_lshlrev_b32 v125, 4, v125")
    a("s_lshl_b32 s43, s36, 17")
    a("v_lshl_add_u32 v122, v1, 13, v124\nv_lshl_add_u32 v123, v1, 13, v125\nv_add_u32 v122, s43, v122\nv_add_u32 v123, s43, v123")
    def issue_W(e, slot):
        a(f"s_add_u32 s43, s40, {e}\ns_and_b32 s43, s43, 7\ns_lshl_b32 s43, s43, 19")
        a(f"s_add_u32 m0, s42, {slot*16384}")
        for q in range(4):
            if q: a(f"s_add_u32 s43, s43, {32768-1024}")
            a(f"buffer_load_dwordx4 v{122+(q>>1)}, s[16:19], s43 offen offset:{q*1024} lds", tag=('W', e))
    for e in range(6): issue_W(e, e)
    a("s_lshr_b32 s44, s2, 13\ns_lshl_b32 s43, s2, 19")
    a("s_add_u32 s8, s66, s43\ns_addc_u32 s9, s67, s44\ns_mov_b32 s10, 0x80000\ns_mov_b32 s11, 0x20000")
    a("s_add_u32 s12, s68, s43\ns_addc_u32 s13, s69, s44\ns_mov_b32 s14, 0x80000\ns_mov_b32 s15, 0x20000")
    a("s_lshl_b32 s43, s37, 19\ns_lshl_b32 s44, s36, 8\ns_add_u32 s43, s43, s44")
    a(f"s_add_u32 s24, s72, s43\ns_addc_u32 s25, s73, 0\ns_mov_b32 s26, {511*1024+256}\ns_mov_b32 s27, 0x20000")
    a("s_lshl_b32 s43, s38, 14")
    a("s_add_u32 s32, s74, s43\ns_addc_u32 s33, s75, 0\ns_mov_b32 s34, 16384\ns_mov_b32 s35, 0x20000")
    c = (128 ** -0.5) * math.log2(math.e)
    import struct
    f2u = lambda f: struct.unpack("<I", struct.pack("<f", f))[0]
    a(f"s_mov_b32 s50, {hex(f2u(c))}\ns_mov_b32 s51, {hex(f2u(T))}\ns_mov_b32 s54, 0xfffffc00")
    a("s_getpc_b64 s[58:59]\nL_pc0:\ns_add_u32 s58, s58, L_slow-L_pc0\ns_addc_u32 s59, s59, 0")
    a(f"v_lshl_add_u32 v{DV}, v1, 8, v124\nv_lshl_add_u32 v{DV+1}, v1, 8, v125\nv_add_u32 v{DV}, s41, v{DV}\nv_add_u32 v{DV+1}, s41, v{DV+1}")
    a(f"v_lshl_add_u32 v{DO}, v1, 10, v124\nv_lshl_add_u32 v{DO+1}, v1, 10, v125")
    a("s_and_b32 s43, s36, 1\ns_lshl_b32 s43, s43, 3")
    a("v_xor_b32 v126, v2, v1\nv_xor_b32 v127, s43, v126")
    a(f"v_xor_b32 v124, 4, v127\nv_lshlrev_b32 v127, 4, v127\nv_lshlrev_b32 v124, 4, v124")
    a(f"v_lshl_add_u32 v{DK}, v1, 8, v127\nv_lshl_add_u32 v{DK+1}, v1, 8, v124\nv_add_u32 v{DK}, s41, v{DK}\nv_add_u32 v{DK+1}, s41, v{DK+1}")
    a(f"v_lshlrev_b32 v126, 4, v126\nv_lshl_add_u32 v{KA}, v2, 8, v126")
    for s in range(1, 4): a(f"v_xor_b32 v{KA+s}, {s<<6}, v{KA}")
    a("v_lshl_add_u32 v127, v2, 10, v126\nv_add_u32 v127, s46, v127")
    a("v_and_b32 v124, 1, v1\nv_lshl_add_u32 v124, v124, 2, v3\nv_lshlrev_b32 v124, 5, v124\nv_lshl_add_u32 v124, v4, 3, v124")
    a(f"v_lshl_add_u32 v125, v1, 3, v3\nv_lshl_add_u32 v{VA}, v125, 8, v124")
    for u in range(1, 8): a(f"v_xor_b32 v{VA+u}, {u<<5}, v{VA}")
    win = {'v': 0, 'k': 0}
    def set_win(which, slot):
        w = slot // 4
        if win[which] == w: return
        d = (w - win[which]) * 65536
        base, n = (VA, 8) if which == 'v' else (KA, 4)
        for i in range(n): a(f"v_add_u32 v{base+i}, {d & 0xffffffff:#x}, v{base+i}")
        win[which] = w
    a.wait_vm('no')
    a("v_readfirstlane_b32 s48, v5\nv_readfirstlane_b32 s49, v6")
    a("s_mul_i32 s52, s48, 0x9e3779b1\ns_add_u32 s52, s52, 0x7f4a7c15")
    a("s_add_u32 s53, s49, 1\ns_and_b32 s53, s53, 0x3ff")
    for u in range(8): a(f"v_mov_b32 v{G_+4*u+1}, s52\nv_mov_b32 v{G_+4*u+3}, s52")
    a.wait_vm('x')
    stamp()
    for Tq in range(16):
        a(f"s_lshl_b32 s43, s40, 1\ns_add_u32 s43, s43, {Tq}\ns_and_b32 s43, s43, 15\ns_lshl_b32 s43, s43, 6")
        a(f"v_xor_b32 v{T_+(Tq&1)}, s43, v127")
        if Tq == 14: a.wait_lg(('x', 3))
        a(f"ds_read_b128 {vr(XF+4*Tq)}, v{T_+(Tq&1)}", tag=('x', Tq))
    free = []
    pend = []
    kvslot = {}
    def barrier():
        a("s_barrier")
        free.extend(pend); pend.clear()
    parts = [0]
    def issue_part():
        k = parts[0]
        if k >= 128: return False
        t, isv = k >> 1, k & 1
        if not isv:
            if not free: return False
            free.sort(); kvslot[t] = free.pop(0)
        sl = kvslot[t]
        a(f"s_mov_b32 s43, {t*8192}\ns_add_u32 m0, s41, {sl*16384 + isv*8192}")
        d, srd = (DV, "s[12:15]") if isv else (DK, "s[8:11]")
        a(f"buffer_load_dwordx4 v{d}, {srd}, s43 offen {nt} lds", tag=('KV', t))
        a(f"buffer_load_dwordx4 v{d+1}, {srd}, s43 offen offset:1024 {nt} lds", tag=('KV', t))
        parts[0] += 1
        return True
    wslot = {e: e for e in range(8)}
    pend.extend([8, 9])
    for e in range(8):
        a.wait_vm(('W', e))
        a.wait_lg_all()
        barrier()
        if e == 0:
            issue_W(6, 6); issue_W(7, 7)
        sl = wslot[e]
        set_win('v', sl)
        off = (sl % 4) * 16384
        jobs = [(T2, u) for T2 in range(2) for u in range(8)]
        def rd(j):
            T2, u = jobs[j]; b = (F_ if T2 == 0 else F2) + 4 * u
            for e2 in range(2):
                a(f"ds_read_b64_tr_b16 {vr(b+2*e2, 2)}, v{VA+u} offset:{off + T2*8192 + e2*1024}", tag=('w', j))
        for j in range(7): rd(j)
        for j in range(16):
            T2, u = jobs[j]; b = (F_ if T2 == 0 else F2) + 4 * u
            a.wait_lg(('w', j))
            cin = "0" if (e == 0 and T2 == 0) else vr(O_+4*u)
            a(f"v_mfma_f32_16x16x32_bf16 {vr(O_+4*u)}, {vr(b)}, {vr(XF+4*(2*e+T2))}, {cin}")
            if j + 7 < 16: rd(j + 7)
        pend.append(sl)
        if e < pre_kv:
            issue_part(); issue_part()
    stamp()
    a(f"s_lshl_b32 s43, s40, 2\ns_add_u32 s43, s43, s36\ns_lshl_b32 s43, s43, 3\ns_add_u32 s43, s43, s37\ns_lshl_b32 s43, s43, 2\ns_add_u32 s43, s43, s39\ns_lshl_b32 s43, s43, 13")
    a(f"s_add_u32 s44, s43, 4096")
    for u in range(8):
        a(f"v_cvt_pk_bf16_f32 v{G_+4*u}, v{O_+4*u}, v{O_+4*u+1}\nv_cvt_pk_bf16_f32 v{G_+4*u+2}, v{O_+4*u+2}, v{O_+4*u+3}")
        a(f"buffer_store_dwordx4 {vr(G_+4*u)}, v{LANE16}, s[28:31], s{43+(u>>2)} offen offset:{(u&3)*1024} sc1", tag='qst')
    for _ in range(2*mid_kv): issue_part()
    a("v_lshrrev_b32 v124, 1, v1\nv_and_b32 v125, 1, v1\nv_lshl_add_u32 v125, v125, 5, v2\nv_lshlrev_b32 v125, 4, v125\nv_lshl_add_u32 v126, v124, 10, v125")
    a("s_lshl_b32 s46, s2, 2\ns_add_u32 s46, s46, s36\ns_lshl_b32 s46, s46, 13\ns_add_u32 s47, s46, 4096")
    def qloads():
        for s in range(4):
            for e in range(2):
                a(f"buffer_load_dwordx4 {vr(F2+8*s+4*e)}, v126, s[28:31], s{46+(s>>1)} offen offset:{(s&1)*2048+e*256} sc1", tag='qld')
    def qcheck():
        for k in range(8):
            a(f"v_xor_b32 v124, s52, v{F2+4*k+1}\nv_xor_b32 v125, s52, v{F2+4*k+3}")
            if k == 0: a(f"v_or_b32 v{T_}, v124, v125")
            else: a(f"v_or3_b32 v{T_}, v{T_}, v124, v125")
        a(f"v_cmp_ne_u32 vcc, 0, v{T_}")
    qloads()
    while issue_part(): pass
    a("v_lshlrev_b32 v124, 10, v1")
    for u in range(8): a(f"v_sub_u32 v{VA+u}, v{VA+u}, v124")
    a("s_mov_b32 s55, 0")
    a.wait_vm('qld')
    qcheck()
    a("s_cbranch_vccnz L_qretry")
    a.label("L_qok")
    for s in range(4):
        for e in range(2):
            a(f"v_mov_b32 v{Q_+4*s+2*e}, v{F2+8*s+4*e}\nv_mov_b32 v{Q_+4*s+2*e+1}, v{F2+8*s+4*e+2}")
    stamp()
    ht_next = [0]; ht_slot = {}; ht_iter = {}; ht_read = [0]
    stg = []
    def wo_dest(ht, u):
        j, e = ht >> 1, ht & 1
        if j < 8: return ar(32*j + 4*u + 2*e, 2)
        return vr(WV + 32*(j-8) + 4*u + 2*e, 2)
    def issue_ht(t):
        ht = ht_next[0]
        if ht >= 32: return False
        if stg: sl = stg.pop(0)
        elif free and (len(free) > 1 or parts[0] >= 128 or (parts[0] & 1)): free.sort(); sl = free.pop(-1)
        else: return False
        ht_slot[ht] = sl; ht_iter[ht] = t
        a(f"s_mov_b32 s43, {ht*16*1024}\ns_add_u32 m0, s42, {sl*16384}")
        for q in range(4):
            if q: a(f"s_add_u32 s43, s43, {4096-1024}")
            a(f"buffer_load_dwordx4 v{DO+(q&1)}, s[24:27], s43 offen offset:{q*1024} {wont} lds", tag=('HT', ht))
        ht_next[0] += 1
        return True
    def read_ht(ht, dest, tag):
        sl = ht_slot[ht]
        a(f"s_add_u32 s43, s42, {(sl*16384 - win['v']*65536) & 0xffffffff:#x}")
        for u in range(8): a(f"v_add_u32 v{T_+u}, s43, v{VA+u}")
        for u in range(8): a(f"ds_read_b64_tr_b16 {dest(u)}, v{T_+u}", tag=tag)
    acc_rate = 0.0
    for t in range(64):
        a.wait_vm(('KV', t))
        a.wait_lg_all()
        barrier()
        if t in (8, 16, 32, 48): stamp()
        if t == 0:
            a("s_or_b32 s43, s39, s36\ns_cmp_eq_u32 s43, 0\ns_cselect_b32 s43, s56, 0x20000000\ns_add_u32 s44, s48, 1")
            a("v_cmp_eq_u32 vcc, 0, v0\nv_mov_b32 v124, 0x20000000\nv_cndmask_b32 v6, v124, 0, vcc\nv_mov_b32 v125, s44")
            a("buffer_store_dword v125, v6, s[28:31], s43 offen sc1", tag='bump')
        sl = kvslot[t]
        set_win('k', sl); set_win('v', sl)
        off = (sl % 4) * 16384
        for f in range(8):
            s, Tt = f >> 1, f & 1
            a(f"ds_read_b128 {vr(F_+4*f)}, v{KA+s} offset:{off + Tt*4096}", tag=('k', f))
        target = 2 * (t + 1 + L)
        if parts[0] >= target - 1 + 2:
            acc_rate += catch
            n_issue = int(acc_rate); acc_rate -= n_issue
        else:
            n_issue = max(0, target - parts[0])
        if t >= wo_start and wo_pat[(t - wo_start) % len(wo_pat)] or (t >= 61): issue_ht(t)
        if n_issue > 0 and issue_part(): n_issue -= 1
        for f in range(8):
            s, Tt = f >> 1, f & 1
            a.wait_lg(('k', f))
            cin = "0" if s == 0 else vr(S_+4*Tt)
            a(f"v_mfma_f32_16x16x32_bf16 {vr(S_+4*Tt)}, {vr(F_+4*f)}, {vr(Q_+4*s)}, {cin}")
            if f == 7: a.wait_lg(('v', 0))
            for e in range(2):
                a(f"ds_read_b64_tr_b16 {vr(F_+4*f+2*e, 2)}, v{VA+f} offset:{off + 8192 + e*4096}", tag=('v', f))
        while n_issue > 0 and issue_part(): n_issue -= 1
        if t == 0:
            for i in range(8): a(f"v_mul_f32 v{S_+i}, s50, v{S_+i}")
        else:
            for i in range(8): a(f"v_fma_f32 v{S_+i}, v{S_+i}, s50, -v{M_}")
        a(f"v_max3_f32 v{T_}, v{S_}, v{S_+1}, v{S_+2}\nv_max3_f32 v{T_+1}, v{S_+3}, v{S_+4}, v{S_+5}")
        a(f"v_max3_f32 v{T_}, v{T_}, v{S_+6}, v{S_+7}\nv_max_f32 v{T_}, v{T_}, v{T_+1}")
        if t == 0:
            a(f"v_mov_b32 v{T_+1}, v{T_}\nv_permlane32_swap_b32 v{T_}, v{T_+1}\nv_max_f32 v{T_}, v{T_}, v{T_+1}")
            a(f"v_mov_b32 v{T_+1}, v{T_}\nv_permlane16_swap_b32 v{T_}, v{T_+1}\nv_max_f32 v{M_}, v{T_}, v{T_+1}")
            for i in range(8): a(f"v_sub_f32 v{S_+i}, v{S_+i}, v{M_}")
        else:
            a(f"v_cmp_lt_f32 vcc, s51, v{T_}")
            a(f"s_cbranch_vccnz L_tramp{t}")
            a.label(f"L_back{t}")
        for i in range(8): a(f"v_exp_f32 v{S_+i}, v{S_+i}")
        for i in range(4): a(f"v_cvt_pk_bf16_f32 v{P_+i}, v{S_+2*i}, v{S_+2*i+1}")
        for u in range(8):
            a.wait_lg(('v', u))
            cin = "0" if t == 0 else vr(O_+4*u)
            a(f"v_mfma_f32_16x16x32_bf16 {vr(O_+4*u)}, {vr(F_+4*u)}, {vr(P_)}, {cin}")
            if t == 0 and u == 0: a(f"v_mov_b32 v{L_}, v{S_}")
            else: a(f"v_add_f32 v{L_}, v{L_}, v{S_+u}")
        pend.append(sl)
        h = ht_read[0]
        if h < 24 and h in ht_iter and ht_iter[h] <= t - 2:
            a.wait_vm(('HT', h))
            read_ht(h, lambda u: wo_dest(h, u), ('ht', h))
            stg.append(ht_slot[h]); ht_read[0] += 1
    assert parts[0] == 128 and ht_next[0] == 32 and ht_read[0] == 24, (parts, ht_next, ht_read, ht_iter)
    stamp()
    xs = free.pop(0)
    a(f"v_mov_b32 v{T_+1}, v{L_}\nv_permlane32_swap_b32 v{L_}, v{T_+1}\nv_add_f32 v{L_}, v{L_}, v{T_+1}")
    a(f"v_mov_b32 v{T_+1}, v{L_}\nv_permlane16_swap_b32 v{L_}, v{T_+1}\nv_add_f32 v{L_}, v{L_}, v{T_+1}")
    a(f"v_rcp_f32 v{L_}, v{L_}")
    a(f"s_add_u32 s43, s42, {xs*16384}\nv_add_u32 v{T_}, s43, v{LANE16}\nv_add_u32 v{T_+1}, {xs*16384}, v{LANE16}")
    for s in range(4):
        for i in range(8): a(f"v_mul_f32 v{O_+8*s+i}, v{O_+8*s+i}, v{L_}")
        for i in range(4): a(f"v_cvt_pk_bf16_f32 v{Q_+4*s+i}, v{O_+8*s+2*i}, v{O_+8*s+2*i+1}")
        a(f"ds_write_b128 v{T_}, {vr(Q_+4*s)} offset:{s*1024}", tag='ow')
    a.wait_lg_all()
    barrier()
    order = [8, 9, 10, 11, 0, 1, 2, 3, 4, 5, 6, 7, 12, 13, 14, 15]
    for k, j in enumerate(order):
        if k == 15: a.wait_lg(('o', order[0]))
        a(f"ds_read_b128 {vr(Q_+4*j)}, v{T_+1} offset:{j*1024}", tag=('o', j))
    a.wait_vm(('HT', 31))
    for k, j in enumerate(order):
        a.wait_lg(('o', j))
        if j >= 12: a.wait_lg(('ht', 2*j+1))
        for u in range(8):
            if j < 8: A = ar(32*j + 4*u)
            elif j < 12: A = vr(WV + 32*(j-8) + 4*u)
            else: A = vr(WV + 32*(j-12) + 4*u)
            cin = "0" if k == 0 else vr(O_+4*u)
            a(f"v_mfma_f32_16x16x32_bf16 {vr(O_+4*u)}, {A}, {vr(Q_+4*j)}, {cin}")
        if k in (3, 4, 5, 6, 7, 8, 9, 10):
            ht = 24 + (k - 3)
            a.wait_lg_all()
            read_ht(ht, lambda u: vr(WV + 32*((ht>>1)-12) + 4*u + 2*(ht&1), 2), ('ht', ht))
    stamp()
    a(f"s_lshl_b32 s43, s38, 3\ns_lshl_b32 s44, s36, 1\ns_add_u32 s43, s43, s44\ns_lshl_b32 s43, s43, 3\ns_add_u32 s43, s43, s37\ns_lshl_b32 s43, s43, 12\ns_add_u32 s43, s43, {OX}\ns_add_u32 s44, s43, 32768")
    a(f"v_mov_b32 v{T_}, s53")
    for u in range(8):
        for i in range(4): a(f"v_bfi_b32 v{O_+4*u+i}, s54, v{O_+4*u+i}, v{T_}")
        a(f"buffer_store_dwordx4 {vr(O_+4*u)}, v{LANE16}, s[28:31], s{43+(u>>2)} offen offset:{(u&3)*1024} sc1", tag='pst')
    a(f"s_lshl_b32 s46, s2, 15\ns_lshl_b32 s47, s36, 10\ns_add_u32 s46, s46, s47\ns_add_u32 s46, s46, {OX}")
    a("s_mov_b32 s55, 0")
    a("s_lshl_b32 s43, s37, 7\ns_lshl_b32 s44, s36, 5\ns_add_u32 s43, s43, s44\nv_lshlrev_b32 v126, 10, v2\nv_lshl_add_u32 v126, v1, 3, v126\nv_add_u32 v126, s43, v126")
    a.label("L_opoll")
    a("s_mov_b32 s47, s46")
    for h in range(8):
        if h: a("s_add_u32 s47, s47, 4096")
        a(f"buffer_load_dwordx4 {vr(F_+4*h)}, v{LANE16}, s[28:31], s47 offen sc1", tag=('in', h))
    for h in range(8):
        a.wait_vm(('in', h))
        for i in range(4): a(f"v_xor_b32 v{F_+4*h+i}, s53, v{F_+4*h+i}")
        if h == 0:
            a(f"v_or3_b32 v{T_}, v{F_}, v{F_+1}, v{F_+2}\nv_or_b32 v{T_}, v{T_}, v{F_+3}")
        else:
            a(f"v_or3_b32 v{T_}, v{T_}, v{F_+4*h}, v{F_+4*h+1}\nv_or3_b32 v{T_}, v{T_}, v{F_+4*h+2}, v{F_+4*h+3}")
            for i in range(4): a(f"v_add_f32 v{F_+i}, v{F_+i}, v{F_+4*h+i}")
    a(f"v_and_b32 v{T_}, 0x3ff, v{T_}\nv_cmp_ne_u32 vcc, 0, v{T_}")
    a("s_cbranch_vccnz L_oretry")
    a.label("L_ook")
    a(f"v_cvt_pk_bf16_f32 v{S_}, v{F_}, v{F_+1}\nv_cvt_pk_bf16_f32 v{S_+1}, v{F_+2}, v{F_+3}")
    a(f"buffer_store_dwordx2 {vr(S_,2)}, v126, s[32:35], 0 offen")
    a("s_or_b32 s43, s37, s36\ns_cmp_eq_u32 s43, 0\ns_cselect_b32 s43, s57, 0x20000000\ns_add_u32 s44, s49, 1\nv_mov_b32 v125, s44")
    a("buffer_store_dword v125, v6, s[28:31], s43 offen sc1")
    if stamps:
        a("s_waitcnt vmcnt(0)")
        stamp()
        a(f"s_lshl_b32 s43, s2, 2\ns_add_u32 s43, s43, s36\ns_lshl_b32 s43, s43, 7\ns_add_u32 s43, s43, {STB}")
        for k in range(st[0]):
            a(f"v_mov_b32 v8, s{80+2*k}\nv_mov_b32 v9, s{81+2*k}")
            a(f"buffer_store_dwordx2 v[8:9], v6, s[28:31], s43 offen offset:{8*k}")
            a("s_nop 1")
    a.label("L_end")
    a("s_endpgm")
    a.flush_hist()
    a.label("L_qretry")
    a("s_add_u32 s55, s55, 1\ns_cmp_gt_u32 s55, 0x40000\ns_cbranch_scc1 L_qok\ns_sleep 4")
    qloads(); a.wait_vm_all(); qcheck()
    a("s_cbranch_vccnz L_qretry\ns_branch L_qok")
    a.label("L_oretry")
    a("s_add_u32 s55, s55, 1\ns_cmp_gt_u32 s55, 0x40000\ns_cbranch_scc1 L_ook\ns_sleep 4\ns_branch L_opoll")
    for t in range(1, 64):
        a.label(f"L_tramp{t}")
        a(f"s_swappc_b64 s[60:61], s[58:59]\ns_branch L_back{t}")
    a.flush_hist()
    a.label("L_slow")
    a("s_nop 7")
    a(f"v_mov_b32 v{T_+1}, v{T_}\nv_permlane32_swap_b32 v{T_}, v{T_+1}\nv_max_f32 v{T_}, v{T_}, v{T_+1}")
    a(f"v_mov_b32 v{T_+1}, v{T_}\nv_permlane16_swap_b32 v{T_}, v{T_+1}\nv_max3_f32 v{T_}, v{T_}, v{T_+1}, 0")
    a(f"v_add_f32 v{M_}, v{M_}, v{T_}\nv_exp_f32 v{T_+1}, -v{T_}")
    for i in range(8): a(f"v_sub_f32 v{S_+i}, v{S_+i}, v{T_}")
    a(f"v_mul_f32 v{L_}, v{L_}, v{T_+1}")
    for i in range(32): a(f"v_mul_f32 v{O_+i}, v{O_+i}, v{T_+1}")
    a("s_nop 1\ns_setpc_b64 s[60:61]")
    a.raw(f""".section .rodata,"a"
.p2align 6
.amdhsa_kernel {KN}
  .amdhsa_next_free_vgpr 512
  .amdhsa_next_free_sgpr 102
  .amdhsa_accum_offset 256
  .amdhsa_group_segment_fixed_size 0
  .amdhsa_kernarg_size 64
  .amdhsa_user_sgpr_count 2
  .amdhsa_user_sgpr_kernarg_segment_ptr 1
  .amdhsa_system_sgpr_workgroup_id_x 1
.end_amdhsa_kernel""")
    info = dict(kvslot=kvslot, ht_iter=ht_iter, ht_slot=ht_slot, nins=a.nins)
    return a.text(), info

if __name__ == "__main__":
    txt, info = gen()
    open("k1.s", "w").write(txt)
    print(info)
    txt, info = gen(stamps=True)
    open("k1s.s", "w").write(txt)
```

```python
import sys, math, struct
from asmlib import Asm
KN = "standalone__gqa_block_cached__sampling_kernel"
QX, OX, NQB, NOB, STB = 0, 0x800000, 0x1000000, 0x1010000, 0x10000000
O_ = 8; Q_ = 40; F_ = 56; S_ = 88; P_ = 96; KA = 100; VA = 104
DK = 112; DV = 114; DO = 116; M_ = 118; L_ = 119; T_ = 120; WV = 128
XF = 128; QT = 192; G_ = 224
LANE16 = 7
def vr(b, n=4): return f"v[{b}:{b+n-1}]"
def ar(b, n=4): return f"a[{b}:{b+n-1}]"
f2u = lambda f: struct.unpack("<I", struct.pack("<f", f))[0]

def gen(stamps=False, L=2, rate=1.0, nt="nt", T=8.0, wont="", xnt="nt", to="", ctouch=True, wtouch=1, retouch=50,
        kvmb=(3, 4, 6), mid_kv=3, b0=12, bd=5, hd=False, slp=32, nstage=3, noburst=False):
    a = Asm()
    def _st(k):
        a(f"s_memrealtime s[{80+2*k}:{81+2*k}]"); a("s_waitcnt lgkmcnt(0)"); a.lg = []
    def stamp(k):
        if stamps and (not hd or k in (0, 10)): _st(k)
    def hstamp(k):
        if stamps and hd: _st(k)
    hdr = open("standalone__gqa_block_cached__sampling.s.ref").read().split("; Override")[0]
    a.raw(hdr.rstrip())
    a.raw("; @launch grid=(256,1,1) block=(256,1,1) lds=163840")
    a.raw('.amdgcn_target "amdgcn-amd-amdhsa--gfx950"\n.text')
    a.raw(f".globl {KN}\n.p2align 8\n.type {KN},@function")
    a.label(KN)
    a("s_cmp_ge_u32 s2, 256\ns_cbranch_scc1 L_end")
    stamp(0)
    a("s_load_dwordx16 s[64:79], s[0:1], 0")
    a("v_lshrrev_b32 v1, 6, v0\nv_and_b32 v0, 63, v0\nv_readfirstlane_b32 s36, v1")
    a("s_and_b32 s37, s2, 7\ns_lshr_b32 s38, s2, 3\ns_and_b32 s39, s38, 3\ns_lshr_b32 s40, s38, 2")
    a("s_lshl_b32 s41, s36, 11\ns_lshl_b32 s42, s36, 12")
    a("v_lshrrev_b32 v1, 4, v0\nv_and_b32 v2, 15, v0\nv_bfe_u32 v3, v0, 2, 2\nv_and_b32 v4, 3, v0")
    a(f"v_lshlrev_b32 v{LANE16}, 4, v0")
    a(f"s_lshl_b32 s43, s39, 6\nv_xor_b32 v{F_}, s43, v{LANE16}")
    for n in range(1, 16): a(f"v_xor_b32 v{F_+n}, {n<<4}, v{F_}")
    a("v_lshlrev_b32 v126, 1, v1\nv_xor_b32 v124, v2, v126\nv_xor_b32 v125, 8, v124")
    a("v_lshlrev_b32 v124, 4, v124\nv_lshlrev_b32 v125, 4, v125")
    a("s_lshl_b32 s43, s36, 17")
    a("v_lshl_add_u32 v122, v1, 13, v124\nv_lshl_add_u32 v123, v1, 13, v125\nv_add_u32 v122, s43, v122\nv_add_u32 v123, s43, v123")
    a(f"s_lshl_b32 s56, s40, 3\ns_add_u32 s56, s56, s37\ns_lshl_b32 s56, s56, 7\ns_add_u32 s56, s56, {NQB}")
    a(f"s_lshl_b32 s57, s38, 7\ns_add_u32 s57, s57, {NOB}")
    a(f"s_lshl_b32 s46, s36, 14\ns_add_u32 s46, s46, {6*16384}")
    a("s_lshl_b32 s43, s40, 2\ns_add_u32 s43, s43, s36\ns_lshl_b32 s43, s43, 14")
    a("s_lshl_b32 s44, s37, 2\ns_add_u32 s44, s44, s39\ns_lshl_b32 s44, s44, 8")
    a("s_waitcnt lgkmcnt(0)")
    a("s_add_u32 s20, s64, s43\ns_addc_u32 s21, s65, 0\ns_mov_b32 s22, 16384\ns_mov_b32 s23, 0x20000")
    a(f"s_add_u32 s16, s70, s44\ns_addc_u32 s17, s71, 0\ns_mov_b32 s18, {511*8192+256}\ns_mov_b32 s19, 0x20000")
    def issue_x(q):
        a(f"s_xor_b32 s45, s39, {q}\ns_lshl_b32 s45, s45, 12\ns_add_u32 m0, s46, s45")
        for n4 in range(4):
            a(f"buffer_load_dwordx4 v{F_+4*q+n4}, s[20:23], s45 offen offset:{n4*1024} {xnt} lds", tag='x')
    def issue_W(e):
        a(f"s_xor_b32 s43, s40, {e}\ns_lshl_b32 s43, s43, 19\ns_add_u32 m0, s42, {e*16384}")
        for q in range(4):
            if q: a(f"s_add_u32 s43, s43, {32768-1024}")
            a(f"buffer_load_dwordx4 v{122+(q>>1)}, s[16:19], s43 offen offset:{q*1024} {xnt} lds", tag=('W', e))
    issue_x(0); issue_W(0)
    a("s_mov_b32 s28, s78\ns_mov_b32 s29, s79\ns_mov_b32 s30, 0x20000000\ns_mov_b32 s31, 0x20000")
    a("buffer_load_dword v5, off, s[28:31], s56 sc1", tag='n')
    a("buffer_load_dword v6, off, s[28:31], s57 sc1", tag='n')
    if ctouch:
        a("s_getpc_b64 s[60:61]\nL_pcp:\ns_mov_b32 s62, L_codeend-L_pcp\ns_mov_b32 s63, 0x20000")
        a("s_lshl_b32 s43, s38, 2\ns_add_u32 s43, s43, s36\ns_lshl_b32 s43, s43, 9\nv_and_b32 v9, 3, v0\nv_lshlrev_b32 v8, 7, v9")
        a("buffer_load_dword v9, v8, s[60:63], s43 offen", tag='ct')
    for q in range(1, 4): issue_x(q)
    hstamp(1)
    for e in range(1, 4): issue_W(e)
    a("s_lshr_b32 s44, s2, 13\ns_lshl_b32 s43, s2, 19")
    a("s_add_u32 s8, s66, s43\ns_addc_u32 s9, s67, s44\ns_mov_b32 s10, 0x80000\ns_mov_b32 s11, 0x20000")
    a("s_add_u32 s12, s68, s43\ns_addc_u32 s13, s69, s44\ns_mov_b32 s14, 0x80000\ns_mov_b32 s15, 0x20000")
    a("s_lshl_b32 s43, s37, 19\ns_lshl_b32 s44, s36, 8\ns_add_u32 s43, s43, s44")
    a(f"s_add_u32 s24, s72, s43\ns_addc_u32 s25, s73, 0\ns_mov_b32 s26, {511*1024+256}\ns_mov_b32 s27, 0x20000")
    a("s_lshl_b32 s43, s38, 14")
    a("s_add_u32 s32, s74, s43\ns_addc_u32 s33, s75, 0\ns_mov_b32 s34, 16384\ns_mov_b32 s35, 0x20000")
    c = (128 ** -0.5) * math.log2(math.e)
    a(f"s_mov_b32 s50, {hex(f2u(c))}\ns_mov_b32 s51, {hex(f2u(T))}\ns_mov_b32 s54, 0xfffffc00")
    a("s_getpc_b64 s[58:59]\nL_pc0:\ns_add_u32 s4, s58, L_burst-L_pc0\ns_addc_u32 s5, s59, 0\ns_add_u32 s58, s58, L_slow-L_pc0\ns_addc_u32 s59, s59, 0")
    a("s_and_b32 s3, s38, 7")
    a(f"v_lshl_add_u32 v{DV}, v1, 8, v124\nv_lshl_add_u32 v{DV+1}, v1, 8, v125\nv_add_u32 v{DV}, s41, v{DV}\nv_add_u32 v{DV+1}, s41, v{DV+1}")
    a(f"v_lshl_add_u32 v{DO}, v1, 10, v124\nv_lshl_add_u32 v{DO+1}, v1, 10, v125")
    a("s_and_b32 s43, s36, 1\ns_lshl_b32 s43, s43, 3")
    a("v_xor_b32 v126, v2, v1\nv_xor_b32 v127, s43, v126")
    a(f"v_xor_b32 v124, 4, v127\nv_lshlrev_b32 v127, 4, v127\nv_lshlrev_b32 v124, 4, v124")
    a(f"v_lshl_add_u32 v{DK}, v1, 8, v127\nv_lshl_add_u32 v{DK+1}, v1, 8, v124\nv_add_u32 v{DK}, s41, v{DK}\nv_add_u32 v{DK+1}, s41, v{DK+1}")
    a(f"v_lshlrev_b32 v126, 4, v126\nv_lshl_add_u32 v{KA}, v2, 8, v126")
    for s in range(1, 4): a(f"v_xor_b32 v{KA+s}, {s<<6}, v{KA}")
    a("s_lshl_b32 s43, s40, 7\nv_lshl_add_u32 v127, v2, 10, v126\nv_add_u32 v127, s46, v127\nv_xor_b32 v127, s43, v127")
    a("v_and_b32 v124, 1, v1\nv_lshl_add_u32 v124, v124, 2, v3\nv_lshlrev_b32 v124, 5, v124\nv_lshl_add_u32 v124, v4, 3, v124")
    a(f"v_lshl_add_u32 v125, v1, 3, v3\nv_lshl_add_u32 v{VA}, v125, 8, v124")
    for u in range(1, 8): a(f"v_xor_b32 v{VA+u}, {u<<5}, v{VA}")
    win = {'v': 0, 'k': 0}
    def set_win(which, w):
        if win[which] == w: return
        d = (w - win[which]) * 65536
        base, n = (VA, 8) if which == 'v' else (KA, 4)
        for i in range(n): a(f"v_add_u32 v{base+i}, {d & 0xffffffff:#x}, v{base+i}")
        win[which] = w
    a.wait_vm('n')
    a("v_readfirstlane_b32 s48, v5\nv_readfirstlane_b32 s49, v6")
    a("s_mul_i32 s52, s48, 0x9e3779b1\ns_add_u32 s52, s52, 0x7f4a7c15")
    a("s_add_u32 s53, s49, 1\ns_and_b32 s53, s53, 0x3ff")
    for u in range(8): a(f"v_mov_b32 v{G_+4*u+1}, s52\nv_mov_b32 v{G_+4*u+3}, s52")
    a.wait_vm('x')
    stamp(1); hstamp(2)
    for Tq in range(16):
        if Tq: a(f"v_xor_b32 v{T_+(Tq&1)}, {Tq<<6}, v127")
        if Tq == 14: a.wait_lg(('x', 3))
        a(f"ds_read_b128 {vr(XF+4*Tq)}, v{T_+(Tq&1) if Tq else 127}", tag=('x', Tq))
    issue_W(4); issue_W(5)
    free = []; pend = [8, 9]; kvslot = {}; reserved = set()
    def barrier():
        a("s_barrier")
        free.extend(pend); pend.clear()
    parts = [0]
    def issue_part():
        k = parts[0]
        if k >= 128: return False
        t, isv = k >> 1, k & 1
        if not isv:
            cand = sorted(s for s in free if s not in reserved)
            if not cand: return False
            free.remove(cand[0]); kvslot[t] = cand[0]
        sl = kvslot[t]
        a(f"s_mov_b32 s43, {t*8192}\ns_add_u32 m0, s41, {sl*16384 + isv*8192}")
        d, srd = (DV, "s[12:15]") if isv else (DK, "s[8:11]")
        a(f"buffer_load_dwordx4 v{d}, {srd}, s43 offen {nt} lds", tag=('KV', t))
        a(f"buffer_load_dwordx4 v{d+1}, {srd}, s43 offen offset:1024 {nt} lds", tag=('KV', t))
        parts[0] += 1
        return True
    a.wait_lg_all()
    barrier()
    hstamp(3)
    for u in range(8): a(f"v_add_u32 v{QT+u}, 0x10000, v{VA+u}")
    def rd(j):
        e, T2, u = j >> 4, (j >> 3) & 1, j & 7
        ad = (VA if e < 4 else QT) + u
        for e2 in range(2):
            a(f"ds_read_b64_tr_b16 {vr(F_+4*u+2*e2, 2)}, v{ad} offset:{(e%4)*16384 + T2*8192 + e2*1024}", tag=('w', j))
    for j in range(7): rd(j)
    for j in range(128):
        e, T2, u = j >> 4, (j >> 3) & 1, j & 7
        a.wait_lg(('w', j))
        cin = "0" if j < 8 else vr(O_+4*u)
        a(f"v_mfma_f32_16x16x32_bf16 {vr(O_+4*u)}, {vr(F_+4*u)}, {vr(XF+4*(2*e+T2))}, {cin}")
        if (j & 15) == 8 and e < 7:
            a.wait_vm(('W', e + 1))
            if e >= 1: pend.append(e - 1)
            barrier()
            mb = e + 1
            if mb == 1: issue_W(6)
            if mb == 2: issue_W(7)
            if mb in (2, 5): hstamp(4 if mb == 2 else 5)
            for _ in range(2 * kvmb.count(mb)): assert issue_part()
        if j + 7 < 128: rd(j + 7)
    pend.extend([6, 7])
    stamp(2); hstamp(6)
    a(f"s_lshl_b32 s43, s40, 2\ns_add_u32 s43, s43, s36\ns_lshl_b32 s43, s43, 3\ns_add_u32 s43, s43, s37\ns_lshl_b32 s43, s43, 2\ns_add_u32 s43, s43, s39\ns_lshl_b32 s43, s43, 13")
    a(f"s_add_u32 s44, s43, 4096")
    for u in range(8):
        a(f"v_cvt_pk_bf16_f32 v{G_+4*u}, v{O_+4*u}, v{O_+4*u+1}\nv_cvt_pk_bf16_f32 v{G_+4*u+2}, v{O_+4*u+2}, v{O_+4*u+3}")
        a(f"buffer_store_dwordx4 {vr(G_+4*u)}, v{LANE16}, s[28:31], s{43+(u>>2)} offen offset:{(u&3)*1024} sc1", tag='qst')
    hstamp(7)
    barrier()
    for _ in range(2*mid_kv): issue_part()
    a("v_lshrrev_b32 v8, 1, v1\nv_and_b32 v9, 1, v1\nv_lshl_add_u32 v9, v9, 5, v2\nv_lshlrev_b32 v9, 4, v9\nv_lshl_add_u32 v10, v8, 10, v9")
    a("s_lshl_b32 s46, s2, 2\ns_add_u32 s46, s46, s36\ns_lshl_b32 s46, s46, 13\ns_add_u32 s47, s46, 4096")
    def qloads():
        for s in range(4):
            for e in range(2):
                a(f"buffer_load_dwordx4 {vr(QT+8*s+4*e)}, v10, s[28:31], s{46+(s>>1)} offen offset:{(s&1)*2048+e*256} sc1", tag='qld')
    def qcheck():
        for k in range(8):
            a(f"v_xor_b32 v8, s52, v{QT+4*k+1}\nv_xor_b32 v9, s52, v{QT+4*k+3}")
            if k == 0: a(f"v_or_b32 v11, v8, v9")
            else: a(f"v_or3_b32 v11, v11, v8, v9")
        a(f"v_cmp_ne_u32 vcc, 0, v11")
    qloads()
    while issue_part(): pass
    hstamp(8)
    a("v_lshlrev_b32 v124, 10, v1")
    for u in range(8): a(f"v_sub_u32 v{VA+u}, v{VA+u}, v124")
    a("s_mov_b32 s55, 0")
    a.wait_vm('qld')
    qcheck()
    a("s_cbranch_vccnz L_qretry")
    a.label("L_qok")
    for s in range(4):
        for e in range(2):
            a(f"v_mov_b32 v{Q_+4*s+2*e}, v{QT+8*s+4*e}\nv_mov_b32 v{Q_+4*s+2*e+1}, v{QT+8*s+4*e+2}")
    if stamps: a("s_mov_b32 s6, s55")
    stamp(3); hstamp(9)
    ht_slot = {}
    def issue_ht(ht, sl):
        ht_slot[ht] = sl
        a(f"s_mov_b32 s43, {ht*16*1024}\ns_add_u32 m0, s42, {sl*16384}")
        for q in range(4):
            if q: a(f"s_add_u32 s43, s43, {4096-1024}")
            a(f"buffer_load_dwordx4 v{DO+(q&1)}, s[24:27], s43 offen offset:{q*1024} {wont} lds", tag=('HT', ht))
    stg = list(range(10 - nstage, 10))
    reserved.update(stg)
    bpos = {b0 + k*bd: k for k in range(8)}
    acc_rate = 0.0
    ht_next = 24
    for t in range(64):
        a.wait_vm(('KV', t))
        a.wait_lg_all()
        barrier()
        if t in (8, 16, 32, 48): stamp({8: 4, 16: 5, 32: 6, 48: 7}[t])
        if t == 0:
            a("s_or_b32 s43, s39, s36\ns_cmp_eq_u32 s43, 0\ns_cselect_b32 s43, s56, 0x20000000\ns_add_u32 s44, s48, 1")
            a("v_cmp_eq_u32 vcc, 0, v0\nv_mov_b32 v124, 0x20000000\nv_cndmask_b32 v6, v124, 0, vcc\nv_mov_b32 v125, s44")
            a("buffer_store_dword v125, v6, s[28:31], s43 offen sc1", tag='bump')
        if t == wtouch:
            a("s_lshl_b32 s43, s38, 14\ns_mul_i32 s44, s36, 3840\ns_add_u32 s43, s43, s44")
            a("v_and_b32 v124, 31, v0\nv_lshlrev_b32 v124, 7, v124")
            a(f"buffer_load_dword v125, v124, s[24:27], s43 offen {to}", tag='wt')
        if t == retouch:
            a("s_lshl_b32 s43, s38, 12\ns_add_u32 s43, s43, 0x60000\ns_cmp_eq_u32 s36, 0\ns_cselect_b32 s43, s43, 0x40000000")
            a("v_and_b32 v124, 31, v0\nv_lshlrev_b32 v124, 7, v124")
            a(f"buffer_load_dword v125, v124, s[24:27], s43 offen {to}", tag='rt')
        if t in bpos and not noburst:
            set_win('v', 0)
            assert win['v'] == 0 and all(s in free for s in stg), (t, win, free)
            a(f"s_cmp_eq_u32 s3, {bpos[t]}\ns_cbranch_scc1 L_btramp{t}")
            a.label(f"L_bback{t}")
        sl = kvslot[t]
        set_win('k', sl // 4); set_win('v', sl // 4)
        off = (sl % 4) * 16384
        for f in range(8):
            s, Tt = f >> 1, f & 1
            a(f"ds_read_b128 {vr(F_+4*f)}, v{KA+s} offset:{off + Tt*4096}", tag=('k', f))
        target = min(128, int(2 * (t + 1 + L)))
        if parts[0] >= target and target < 128:
            acc_rate += rate; n_issue = int(acc_rate); acc_rate -= n_issue
        else: n_issue = target - parts[0]
        if n_issue > 0 and issue_part(): n_issue -= 1
        for f in range(8):
            s, Tt = f >> 1, f & 1
            a.wait_lg(('k', f))
            cin = "0" if s == 0 else vr(S_+4*Tt)
            a(f"v_mfma_f32_16x16x32_bf16 {vr(S_+4*Tt)}, {vr(F_+4*f)}, {vr(Q_+4*s)}, {cin}")
            if f == 7: a.wait_lg(('v', 0))
            for e in range(2):
                a(f"ds_read_b64_tr_b16 {vr(F_+4*f+2*e, 2)}, v{VA+f} offset:{off + 8192 + e*4096}", tag=('v', f))
        while n_issue > 0 and issue_part(): n_issue -= 1
        if parts[0] == 128:
            free.sort(reverse=True)
            while ht_next < 32 and free and (t < 63 or len(free) > 1):
                issue_ht(ht_next, free.pop(0)); ht_next += 1
        if t == 0:
            for i in range(8): a(f"v_mul_f32 v{S_+i}, s50, v{S_+i}")
        else:
            for i in range(8): a(f"v_fma_f32 v{S_+i}, v{S_+i}, s50, -v{M_}")
        a(f"v_max3_f32 v{T_}, v{S_}, v{S_+1}, v{S_+2}\nv_max3_f32 v{T_+1}, v{S_+3}, v{S_+4}, v{S_+5}")
        a(f"v_max3_f32 v{T_}, v{T_}, v{S_+6}, v{S_+7}\nv_max_f32 v{T_}, v{T_}, v{T_+1}")
        if t == 0:
            a(f"v_mov_b32 v{T_+1}, v{T_}\nv_permlane32_swap_b32 v{T_}, v{T_+1}\nv_max_f32 v{T_}, v{T_}, v{T_+1}")
            a(f"v_mov_b32 v{T_+1}, v{T_}\nv_permlane16_swap_b32 v{T_}, v{T_+1}\nv_max_f32 v{M_}, v{T_}, v{T_+1}")
            for i in range(8): a(f"v_sub_f32 v{S_+i}, v{S_+i}, v{M_}")
        else:
            a(f"v_cmp_lt_f32 vcc, s51, v{T_}")
            a(f"s_cbranch_vccnz L_tramp{t}")
            a.label(f"L_back{t}")
        for i in range(8): a(f"v_exp_f32 v{S_+i}, v{S_+i}")
        for i in range(4): a(f"v_cvt_pk_bf16_f32 v{P_+i}, v{S_+2*i}, v{S_+2*i+1}")
        for u in range(8):
            a.wait_lg(('v', u))
            cin = "0" if t == 0 else vr(O_+4*u)
            a(f"v_mfma_f32_16x16x32_bf16 {vr(O_+4*u)}, {vr(F_+4*u)}, {vr(P_)}, {cin}")
            if t == 0 and u == 0: a(f"v_mov_b32 v{L_}, v{S_}")
            else: a(f"v_add_f32 v{L_}, v{L_}, v{S_+u}")
        pend.append(sl)
    assert parts[0] == 128 and ht_next == 32
    stamp(8)
    xs = free.pop(0)
    a(f"v_mov_b32 v{T_+1}, v{L_}\nv_permlane32_swap_b32 v{L_}, v{T_+1}\nv_add_f32 v{L_}, v{L_}, v{T_+1}")
    a(f"v_mov_b32 v{T_+1}, v{L_}\nv_permlane16_swap_b32 v{L_}, v{T_+1}\nv_add_f32 v{L_}, v{L_}, v{T_+1}")
    a(f"v_rcp_f32 v{L_}, v{L_}")
    a(f"s_add_u32 s43, s42, {xs*16384}\nv_add_u32 v{T_}, s43, v{LANE16}\nv_add_u32 v{T_+1}, {xs*16384}, v{LANE16}")
    for s in range(4):
        for i in range(8): a(f"v_mul_f32 v{O_+8*s+i}, v{O_+8*s+i}, v{L_}")
        for i in range(4): a(f"v_cvt_pk_bf16_f32 v{Q_+4*s+i}, v{O_+8*s+2*i}, v{O_+8*s+2*i+1}")
        a(f"ds_write_b128 v{T_}, {vr(Q_+4*s)} offset:{s*1024}", tag='ow')
    a.wait_lg_all()
    barrier()
    order = [8, 9, 10, 11, 0, 1, 2, 3, 4, 5, 6, 7, 12, 13, 14, 15]
    for k, j in enumerate(order):
        if k == 15: a.wait_lg(('o', order[0]))
        a(f"ds_read_b128 {vr(Q_+4*j)}, v{T_+1} offset:{j*1024}", tag=('o', j))
    for k, j in enumerate(order):
        a.wait_lg(('o', j))
        if j >= 12: a.wait_lg(('ht', 2*j+1))
        for u in range(8):
            if j < 8: A = ar(32*j + 4*u)
            elif j < 12: A = vr(WV + 32*(j-8) + 4*u)
            else: A = vr(WV + 32*(j-12) + 4*u)
            cin = "0" if k == 0 else vr(O_+4*u)
            a(f"v_mfma_f32_16x16x32_bf16 {vr(O_+4*u)}, {A}, {vr(Q_+4*j)}, {cin}")
        if 3 <= k <= 10:
            ht = 24 + (k - 3)
            a.wait_lg_all()
            a.wait_vm(('HT', ht))
            a(f"s_add_u32 s43, s42, {(ht_slot[ht]*16384 - win['v']*65536) & 0xffffffff:#x}")
            for u in range(8): a(f"v_add_u32 v{T_+u}, s43, v{VA+u}")
            for u in range(8): a(f"ds_read_b64_tr_b16 {vr(WV + 32*((ht>>1)-12) + 4*u + 2*(ht&1), 2)}, v{T_+u}", tag=('ht', ht))
    stamp(9)
    a(f"s_lshl_b32 s43, s38, 3\ns_lshl_b32 s44, s36, 1\ns_add_u32 s43, s43, s44\ns_lshl_b32 s43, s43, 3\ns_add_u32 s43, s43, s37\ns_lshl_b32 s43, s43, 12\ns_add_u32 s43, s43, {OX}\ns_add_u32 s44, s43, 32768")
    a(f"v_mov_b32 v{T_}, s53")
    for u in range(8):
        for i in range(4): a(f"v_bfi_b32 v{O_+4*u+i}, s54, v{O_+4*u+i}, v{T_}")
        a(f"buffer_store_dwordx4 {vr(O_+4*u)}, v{LANE16}, s[28:31], s{43+(u>>2)} offen offset:{(u&3)*1024} sc1", tag='pst')
    a(f"s_lshl_b32 s46, s2, 15\ns_lshl_b32 s47, s36, 10\ns_add_u32 s46, s46, s47\ns_add_u32 s46, s46, {OX}")
    a("s_mov_b32 s55, 0")
    a("s_lshl_b32 s43, s37, 7\ns_lshl_b32 s44, s36, 5\ns_add_u32 s43, s43, s44\nv_lshlrev_b32 v126, 10, v2\nv_lshl_add_u32 v126, v1, 3, v126\nv_add_u32 v126, s43, v126")
    a.label("L_opoll")
    a("s_mov_b32 s47, s46")
    for h in range(8):
        if h: a("s_add_u32 s47, s47, 4096")
        a(f"buffer_load_dwordx4 {vr(F_+4*h)}, v{LANE16}, s[28:31], s47 offen sc1", tag=('in', h))
    for h in range(8):
        a.wait_vm(('in', h))
        for i in range(4): a(f"v_xor_b32 v{F_+4*h+i}, s53, v{F_+4*h+i}")
        if h == 0:
            a(f"v_or3_b32 v{T_}, v{F_}, v{F_+1}, v{F_+2}\nv_or_b32 v{T_}, v{T_}, v{F_+3}")
        else:
            a(f"v_or3_b32 v{T_}, v{T_}, v{F_+4*h}, v{F_+4*h+1}\nv_or3_b32 v{T_}, v{T_}, v{F_+4*h+2}, v{F_+4*h+3}")
            for i in range(4): a(f"v_add_f32 v{F_+i}, v{F_+i}, v{F_+4*h+i}")
    a(f"v_and_b32 v{T_}, 0x3ff, v{T_}\nv_cmp_ne_u32 vcc, 0, v{T_}")
    a("s_cbranch_vccnz L_oretry")
    a.label("L_ook")
    a(f"v_cvt_pk_bf16_f32 v{S_}, v{F_}, v{F_+1}\nv_cvt_pk_bf16_f32 v{S_+1}, v{F_+2}, v{F_+3}")
    a(f"buffer_store_dwordx2 {vr(S_,2)}, v126, s[32:35], 0 offen")
    a("s_or_b32 s43, s37, s36\ns_cmp_eq_u32 s43, 0\ns_cselect_b32 s43, s57, 0x20000000\ns_add_u32 s44, s49, 1\nv_mov_b32 v125, s44")
    a("buffer_store_dword v125, v6, s[28:31], s43 offen sc1")
    if stamps:
        a("s_waitcnt vmcnt(0)")
        stamp(10)
        a(f"s_lshl_b32 s43, s2, 2\ns_add_u32 s43, s43, s36\ns_lshl_b32 s43, s43, 7\ns_add_u32 s43, s43, {STB}")
        for k in range(11):
            a(f"v_mov_b32 v8, s{80+2*k}\nv_mov_b32 v9, s{81+2*k}")
            a(f"buffer_store_dwordx2 v[8:9], v6, s[28:31], s43 offen offset:{8*k}")
            a("s_nop 1")
        for k, r in ((11, 6), (12, 55), (13, 7)):
            if r == 7: a("s_mov_b32 s44, s7")
            else: a(f"s_mul_i32 s44, s{r}, 100")
            a(f"s_add_u32 s44, s44, s80\ns_addc_u32 s45, s81, 0\nv_mov_b32 v8, s44\nv_mov_b32 v9, s45")
            a(f"buffer_store_dwordx2 v[8:9], v6, s[28:31], s43 offen offset:{8*k}")
            a("s_nop 1")
    a.label("L_end")
    a("s_endpgm")
    a.flush_hist()
    a.label("L_qretry")
    a(f"s_add_u32 s55, s55, 1\ns_cmp_gt_u32 s55, 0x40000\ns_cbranch_scc1 L_qok\ns_sleep {slp}")
    qloads(); a.wait_vm_all(); qcheck()
    a("s_cbranch_vccnz L_qretry\ns_branch L_qok")
    a.label("L_oretry")
    a("s_add_u32 s55, s55, 1\ns_cmp_gt_u32 s55, 0x40000\ns_cbranch_scc1 L_ook\ns_sleep 4\ns_branch L_opoll")
    for t in range(1, 64):
        a.label(f"L_tramp{t}")
        a(f"s_swappc_b64 s[60:61], s[58:59]\ns_branch L_back{t}")
    if not noburst:
        for t in bpos:
            a.label(f"L_btramp{t}")
            a(f"s_swappc_b64 s[60:61], s[4:5]\ns_branch L_bback{t}")
    a.flush_hist()
    a.label("L_slow")
    a("s_nop 7")
    a(f"v_mov_b32 v{T_+1}, v{T_}\nv_permlane32_swap_b32 v{T_}, v{T_+1}\nv_max_f32 v{T_}, v{T_}, v{T_+1}")
    a(f"v_mov_b32 v{T_+1}, v{T_}\nv_permlane16_swap_b32 v{T_}, v{T_+1}\nv_max3_f32 v{T_}, v{T_}, v{T_+1}, 0")
    a(f"v_add_f32 v{M_}, v{M_}, v{T_}\nv_exp_f32 v{T_+1}, -v{T_}")
    for i in range(8): a(f"v_sub_f32 v{S_+i}, v{S_+i}, v{T_}")
    a(f"v_mul_f32 v{L_}, v{L_}, v{T_+1}")
    for i in range(32): a(f"v_mul_f32 v{O_+i}, v{O_+i}, v{T_+1}")
    a("s_nop 1\ns_setpc_b64 s[60:61]")
    a.flush_hist(); a.vm = []; a.lg = []
    a.label("L_burst")
    if stamps: a("s_memrealtime s[62:63]")
    def wo_dest(ht, u):
        j, e = ht >> 1, ht & 1
        if j < 8: return ar(32*j + 4*u + 2*e, 2)
        return vr(WV + 32*(j-8) + 4*u + 2*e, 2)
    for h in range(nstage): issue_ht(h, stg[h])
    a(f"s_add_u32 s43, s42, {stg[0]*16384}")
    for u in range(8): a(f"v_add_u32 v{T_+u}, s43, v{VA+u}")
    for h in range(24):
        a.wait_vm(('HT', h))
        for u in range(8):
            a(f"ds_read_b64_tr_b16 {wo_dest(h, u)}, v{T_+u} offset:{(h % nstage)*16384}", tag=('ht', h))
        a.wait_lg_all()
        if h + nstage < 24: issue_ht(h + nstage, stg[h % nstage])
    if stamps:
        a("s_memrealtime s[44:45]\ns_waitcnt lgkmcnt(0)\ns_sub_u32 s7, s44, s62")
    a("s_setpc_b64 s[60:61]")
    a.label("L_codeend")
    a.raw(f""".section .rodata,"a"
.p2align 6
.amdhsa_kernel {KN}
  .amdhsa_next_free_vgpr 512
  .amdhsa_next_free_sgpr 102
  .amdhsa_accum_offset 256
  .amdhsa_group_segment_fixed_size 0
  .amdhsa_kernarg_size 64
  .amdhsa_user_sgpr_count 2
  .amdhsa_user_sgpr_kernarg_segment_ptr 1
  .amdhsa_system_sgpr_workgroup_id_x 1
.end_amdhsa_kernel""")
    return a.text(), dict(kvslot=kvslot, ht_slot=ht_slot, nins=a.nins)

if __name__ == "__main__":
    C = {
      "t_sc0nt": dict(to="sc0 nt", L=2.5),
      "t_sc1nt": dict(to="sc1 nt", L=2.5),
      "t_sc01nt": dict(to="sc0 sc1 nt", L=2.5),
      "t_sc1": dict(to="sc1", L=2.5),
      "kv_sc1nt": dict(nt="sc1 nt", L=2.5),
      "kv_sc01nt": dict(nt="sc0 sc1 nt", L=2.5),
      "kv_sc01nt_tnt": dict(nt="sc0 sc1 nt", to="nt", L=2.5),
    }
    names = []
    for n, kw in C.items():
        txt, info = gen(stamps=True, **kw)
        if n == "a": print(info)
        open(f"k7_{n}.s", "w").write(txt); names.append(f"k7_{n}.s")
    txt, info = gen(L=2.5)
    open("k7.s", "w").write(txt)
    print(" ".join(names)); print(", ".join(f'"dev/{n}"' for n in names))
```
